```python
import torch

def _softmax(x, axis=-1):
    return torch.softmax(x, dim=axis)
def _gelu(x):
    return torch.nn.functional.gelu(x, approximate="tanh")
def _silu(x):
    return torch.nn.functional.silu(x)
def _sigmoid(x):
    return torch.sigmoid(x)
def _layernorm(x, axis=-1, eps=1e-5):
    m = x.mean(dim=axis, keepdim=True)
    v = x.var(dim=axis, keepdim=True, unbiased=False)
    return (x - m) / torch.sqrt(v + eps)
def _scatter_add(tgt, idx, src, axis=0):
    return tgt.clone().index_add_(axis, idx, src)
def _segment_sum(src, seg, n):
    out = torch.zeros((n,) + src.shape[1:], dtype=src.dtype)
    return out.index_add_(0, seg, src)
def _pad(x, pw):
    flat = tuple(v for pair in reversed(pw) for v in pair)
    return torch.nn.functional.pad(x, flat)

kernel_name = 'gated_mix__sliding_block__glu_gated_glu__prompt'

def setup_inputs():

    _w = (lambda a: (lambda t: t.to(torch.bfloat16) if t.is_floating_point() else t)(torch.as_tensor(a)))
    def _A_setup():
        B, S, D = 1, 2048, 512
        return {
            "x": _w((lambda *s: torch.randn(*s, dtype=torch.bfloat16) * 0.05)(B, S, D)),
            "wqkv": _w((lambda *s: torch.randn(*s, dtype=torch.bfloat16) * 0.8)(D, 3 * D)),
            "wo": _w((lambda *s: torch.randn(*s, dtype=torch.bfloat16) * 0.05)(D, D)),
        }
    _A_in = _A_setup()

    def _B_setup():
        B, S, D, F = 1, 2048, 512, 1376
        return {
            "x": _w((lambda *s: torch.randn(*s, dtype=torch.bfloat16) * 0.05)(B, S, D)),
            "w_gate": _w((lambda *s: torch.randn(*s, dtype=torch.bfloat16) * 1.6)(D, F)),
            "w_up": _w((lambda *s: torch.randn(*s, dtype=torch.bfloat16) * 0.1)(D, F)),
            "w_down": _w((lambda *s: torch.randn(*s, dtype=torch.bfloat16) * 0.1)(F, D)),
        }
    _B_in = _B_setup()

    return {
        "A_x": _A_in["x"],
        "A_wqkv": _A_in["wqkv"],
        "A_wo": _A_in["wo"],
        "B_x": _B_in["x"],
        "B_w_gate": _B_in["w_gate"],
        "B_w_up": _B_in["w_up"],
        "B_w_down": _B_in["w_down"],
        "gate_w": _w((lambda *s: torch.randn(*s, dtype=torch.bfloat16) * 0.05)(512) * 16.0),
    }

def reference(A_x, A_wqkv, A_wo, B_x, B_w_gate, B_w_up, B_w_down, gate_w):
    def _A_ref(x, wqkv, wo):
        B, S, D = x.shape
        H = 32; Dh = D // H; W = 256
        qkv = (lambda x, *d: x.permute(*d))((x @ wqkv).reshape(B, S, 3, H, Dh), 2, 0, 3, 1, 4)
        q, k, v = qkv[0], qkv[1], qkv[2]
        scores = torch.einsum("bhqd,bhkd->bhqk", q, k) * (Dh ** -0.5)
        idx = torch.arange(S)
        mask = (idx[:, None] - idx[None, :] >= 0) & (idx[:, None] - idx[None, :] < W)
        scores = torch.where(mask[None, None], scores, -1e9)
        p = _softmax(scores, axis=-1)
        o = torch.einsum("bhqk,bhkd->bhqd", p, v)
        return (lambda x, *d: x.permute(*d))(o, 0, 2, 1, 3).reshape(B, S, D) @ wo

    def _B_ref(x, w_gate, w_up, w_down):
        g = torch.einsum("bsd,df->bsf", x, w_gate)
        u = torch.einsum("bsd,df->bsf", x, w_up)
        h = _sigmoid(g) * u
        return torch.einsum("bsf,fd->bsd", h, w_down)

    x = A_x
    g = _sigmoid((x * gate_w).sum(-1, keepdims=True))
    a = _A_ref(x, A_wqkv, A_wo)
    b = _B_ref(x, B_w_gate, B_w_up, B_w_down)
    return g * a + (1 - g) * b
```

```python
from common import *
def mk(name, body, nrep=200):
    s = head(name)
    s += """
    s_load_dwordx2 s[4:5], s[0:1], 0
    v_lshrrev_b32 v1, 6, v0
    s_waitcnt lgkmcnt(0)
    s_mov_b32 s8, s4
    s_mov_b32 s9, s5
    s_mov_b32 s10, 0x100000
    s_mov_b32 s11, 0x00020000
"""
    for i in range(2, 100):
        s += f"    v_cvt_f32_u32 v{i}, v0\n"
    s += f"""
    s_mov_b32 s12, 2
 v_and_b32 v100, 63, v0
 v_lshlrev_b32 v100, 3, v100
 .p2align 3
 s_mov_b64 vcc, 0x55
 s_mov_b64 s[20:21], 0x55

L_outer_{name}:
    s_barrier
    s_memtime s[14:15]
    s_waitcnt lgkmcnt(0)
    s_mov_b32 s13, {nrep}
.p2align 3
L_loop_{name}:
{body}
    s_sub_u32 s13, s13, 1
    s_cmp_lg_u32 s13, 0
    s_cbranch_scc1 L_loop_{name}
    s_memtime s[16:17]
    s_waitcnt lgkmcnt(0)
    s_sub_u32 s12, s12, 1
    s_cmp_lg_u32 s12, 0
    s_cbranch_scc1 L_outer_{name}
    s_sub_u32 s16, s16, s14
    v_mov_b32 v2, s16
    s_lshl_b32 s3, s2, 4
    v_add_u32 v1, s3, v1
    v_lshlrev_b32 v1, 2, v1
    buffer_store_dword v2, v1, s[8:11], 0 offen
    s_waitcnt vmcnt(0)
    s_endpgm
"""
    s += kd(name, vgpr=128, kernarg=8, accum=112)
    return s

def rep(fmt, n=32, base=8, stride=1, mod=64):
    return "".join("    " + fmt.format(d=base + (i * stride) % mod, e=base + (i * stride) % mod + 1) + "\n" for i in range(n))


mf = lambda i: f"    v_mfma_f32_32x32x16_bf16 v[{16+16*(i%4)}:{31+16*(i%4)}], a[0:3], a[4:7], v[{16+16*(i%4)}:{31+16*(i%4)}]\n"
tests = {
 "exp": ("".join(f"    v_exp_f32 v{8+i}, v2\n    v_exp_f32 v{40+i}, v2\n" for i in range(16)), 32),
 "exp_snop": ("".join(f"    v_exp_f32 v{8+i}, v2\n    s_nop 0\n" for i in range(32)), 32),
 "exp_salu": ("".join(f"    v_exp_f32 v{8+i}, v2\n    s_add_u32 s30, s31, s32\n" for i in range(32)), 32),
 "exp_2salu": ("".join(f"    v_exp_f32 v{8+i}, v2\n    s_add_u32 s30, s31, s32\n    s_add_u32 s33, s31, s32\n    v_exp_f32 v{8+i}, v2\n    s_add_u32 s30, s31, s32\n    s_add_u32 s33, s31, s32\n" for i in range(16)), 32),
 "exp_dsr": ("".join(f"    v_exp_f32 v{8+i}, v2\n    v_exp_f32 v{8+i}, v2\n    ds_read_b64_tr_b16 a[8:9], v100 offset:{512*i}\n" for i in range(16)) + "    s_waitcnt lgkmcnt(0)\n    s_nop 0\n", 32),
 "max_salu": ("".join(f"    v_max3_f32 v{8+i}, v2, v3, v2\n    s_add_u32 s30, s31, s32\n    s_add_u32 s30, s31, s32\n" for i in range(32)), 32),
 "mfma_6salu": ("".join(mf(i) + "    s_add_u32 s30, s31, s32\n" * 6 for i in range(16)), 16),
 "mfma_8salu": ("".join(mf(i) + "    s_add_u32 s30, s31, s32\n" * 8 for i in range(16)), 16),
 "mfma_6v": ("".join(mf(i) + "    v_max3_f32 v90, v2, v3, v2\n" * 6 for i in range(16)), 16),
 "mfma_6v_1s": ("".join(mf(i) + "    s_add_u32 s30, s31, s32\n    s_nop 0\n" + "    v_max3_f32 v90, v2, v3, v2\n" * 6  for i in range(16)), 16),
 "mfma_2tr": ("".join(mf(i) + f"    ds_read_b64_tr_b16 a[8:9], v100 offset:{1024*i}\n    ds_read_b64_tr_b16 a[10:11], v100 offset:{1024*i+256}\n    s_waitcnt lgkmcnt(4)\n    s_nop 0\n" for i in range(16)), 16),
 "mfma_2tr_3v": ("".join(mf(i) + f"    ds_read_b64_tr_b16 a[8:9], v100 offset:{1024*i}\n    ds_read_b64_tr_b16 a[10:11], v100 offset:{1024*i+256}\n    s_waitcnt lgkmcnt(4)\n    s_nop 0\n" + "    v_max3_f32 v90, v2, v3, v2\n" * 3 for i in range(16)), 16),
 "mfma_2tr_4v": ("".join(mf(i) + f"    ds_read_b64_tr_b16 a[8:9], v100 offset:{1024*i}\n    ds_read_b64_tr_b16 a[10:11], v100 offset:{1024*i+256}\n" + "    v_max3_f32 v90, v2, v3, v2\n" * 4 for i in range(16)), 16),
 "mfma_2tr_5v": ("".join(mf(i) + f"    ds_read_b64_tr_b16 a[8:9], v100 offset:{1024*i}\n    ds_read_b64_tr_b16 a[10:11], v100 offset:{1024*i+256}\n" + "    v_max3_f32 v90, v2, v3, v2\n" * 5 for i in range(16)), 16),
 "mfma_2tr_6v": ("".join(mf(i) + f"    ds_read_b64_tr_b16 a[8:9], v100 offset:{1024*i}\n    ds_read_b64_tr_b16 a[10:11], v100 offset:{1024*i+256}\n" + "    v_max3_f32 v90, v2, v3, v2\n" * 6 for i in range(16)), 16),
 "mfma_4tr": ("".join(mf(i) + "".join(f"    ds_read_b64_tr_b16 a[{8+2*q}:{9+2*q}], v100 offset:{1024*i+256*q}\n" for q in range(4)) for i in range(16)), 16),
 "mfma_exp2_2tr": ("".join(mf(i) + f"    v_exp_f32 v90, v2\n    v_exp_f32 v91, v2\n    ds_read_b64_tr_b16 a[8:9], v100 offset:{1024*i}\n    v_exp_f32 v90, v2\n    s_nop 0\n    ds_read_b64_tr_b16 a[10:11], v100 offset:{1024*i+256}\n" for i in range(16)), 16),
}
src = ""
for k, (b, n) in tests.items():
    src += mk("k_" + k, b * 8, 25)
src += meta([("k_" + k, 128, 1024) for k in tests], 8)
co = build(src, "valu2_gen")
if os.path.exists("/dev/kfd"):
    m = Module(co)
    out = DeviceBuffer(1 << 20)
    for k, (b, n) in tests.items():
        f = m.fn("k_" + k)
        res = []
        for block in (256, 512):
            memset(out, 0)
            launch(f, 256, block, [out.ptr], lds=32768); sync()
            o = out.to_numpy(np.uint32, (1 << 18,))[: 256 * 16].reshape(256, 16)[:, : block // 64]
            wps = block // 256
            res.append(f"{wps}w/SIMD: {o.max(axis=1).mean() / (200 * n) / wps:6.2f} cyc/instr/SIMD")
        print(f"{k:16s}", " | ".join(res))
```
